```python
import torch

def _softmax(x, axis=-1):
    return torch.softmax(x, dim=axis)
def _gelu(x):
    return torch.nn.functional.gelu(x, approximate="tanh")
def _silu(x):
    return torch.nn.functional.silu(x)
def _sigmoid(x):
    return torch.sigmoid(x)
def _layernorm(x, axis=-1, eps=1e-5):
    m = x.mean(dim=axis, keepdim=True)
    v = x.var(dim=axis, keepdim=True, unbiased=False)
    return (x - m) / torch.sqrt(v + eps)
def _scatter_add(tgt, idx, src, axis=0):
    return tgt.clone().index_add_(axis, idx, src)
def _segment_sum(src, seg, n):
    out = torch.zeros((n,) + src.shape[1:], dtype=src.dtype)
    return out.index_add_(0, seg, src)
def _pad(x, pw):
    flat = tuple(v for pair in reversed(pw) for v in pair)
    return torch.nn.functional.pad(x, flat)

kernel_name = 'parallel_sum__sliding_block__mixer_token_mlp__prompt'

def setup_inputs():

    _w = (lambda a: (lambda t: t.to(torch.bfloat16) if t.is_floating_point() else t)(torch.as_tensor(a)))
    def _A_setup():
        B, S, D = 1, 2048, 640
        return {
            "x": _w((lambda *s: torch.randn(*s, dtype=torch.bfloat16) * 0.05)(B, S, D)),
            "wqkv": _w((lambda *s: torch.randn(*s, dtype=torch.bfloat16) * 0.05)(D, 3 * D)),
            "wo": _w((lambda *s: torch.randn(*s, dtype=torch.bfloat16) * 0.05)(D, D)),
        }
    _A_in = _A_setup()

    def _B_setup():
        B, S, D, F = 1, 2048, 640, 1728
        return {
            "x": _w((lambda *s: torch.randn(*s, dtype=torch.bfloat16) * 0.05)(B, S, D)),
            "w1": _w((lambda *s: torch.randn(*s, dtype=torch.bfloat16) * 0.8)(S, F) * (S ** -0.5)),
            "b1": _w((lambda *s: torch.randn(*s, dtype=torch.bfloat16) * 0.8)(F) * 0.02),
            "w2": _w((lambda *s: torch.randn(*s, dtype=torch.bfloat16) * 0.8)(F, S) * (F ** -0.5)),
            "b2": _w((lambda *s: torch.randn(*s, dtype=torch.bfloat16) * 0.8)(S) * 0.02),
        }
    _B_in = _B_setup()

    return {
        "A_x": _A_in["x"],
        "A_wqkv": _A_in["wqkv"],
        "A_wo": _A_in["wo"],
        "B_x": _B_in["x"],
        "B_w1": _B_in["w1"],
        "B_b1": _B_in["b1"],
        "B_w2": _B_in["w2"],
        "B_b2": _B_in["b2"],
    }

def reference(A_x, A_wqkv, A_wo, B_x, B_w1, B_b1, B_w2, B_b2):
    def _A_ref(x, wqkv, wo):
        B, S, D = x.shape
        H = 32; Dh = D // H; W = 256
        qkv = (lambda x, *d: x.permute(*d))((x @ wqkv).reshape(B, S, 3, H, Dh), 2, 0, 3, 1, 4)
        q, k, v = qkv[0], qkv[1], qkv[2]
        scores = torch.einsum("bhqd,bhkd->bhqk", q, k) * (Dh ** -0.5)
        idx = torch.arange(S)
        mask = (idx[:, None] - idx[None, :] >= 0) & (idx[:, None] - idx[None, :] < W)
        scores = torch.where(mask[None, None], scores, -1e9)
        p = _softmax(scores, axis=-1)
        o = torch.einsum("bhqk,bhkd->bhqd", p, v)
        return (lambda x, *d: x.permute(*d))(o, 0, 2, 1, 3).reshape(B, S, D) @ wo

    def _B_ref(x, w1, b1, w2, b2):
        B, S, D = x.shape
        h = _layernorm(x, axis=-1)
        u = torch.einsum("bsd,sf->bdf", h, w1) + b1
        u = _gelu(u)
        y = torch.einsum("bdf,fs->bds", u, w2) + b2
        return (lambda x, *d: x.permute(*d))(y, 0, 2, 1)

    x = A_x
    xn = _layernorm(x, axis=-1)
    return x + _A_ref(xn, A_wqkv, A_wo) + _B_ref(xn, B_w1, B_b1, B_w2, B_b2)
```

```python
import re

def vr(a, n=1):
    return f"v{a}" if n == 1 else f"v[{a}:{a+n-1}]"
def sr(a, n=1):
    return f"s{a}" if n == 1 else f"s[{a}:{a+n-1}]"

_REG = re.compile(r'^-?\|?(?:abs\()?([vsa])(?:(\d+)|\[(\d+):(\d+)\])\)?\|?$')
def regs_of(op):
    op = op.strip()
    if op in ('vcc',): return [('s', 'vcc_lo'), ('s', 'vcc_hi')]
    if op in ('vcc_lo', 'vcc_hi'): return [('s', op)]
    if op == 'exec': return [('s', 'exec_lo'), ('s', 'exec_hi')]
    if op in ('exec_lo', 'exec_hi'): return [('s', op)]
    if op == 'm0': return [('s', 'm0')]
    m = _REG.match(op)
    if not m: return []
    k = m.group(1)
    if m.group(2) is not None: return [(k, int(m.group(2)))]
    return [(k, i) for i in range(int(m.group(3)), int(m.group(4)) + 1)]

TRANS = ('v_exp_f32', 'v_log_f32', 'v_rcp_f32', 'v_rsq_f32', 'v_sqrt_f32', 'v_sin_f32', 'v_cos_f32', 'v_rcp_iflag_f32')
NODST_S = ('s_cmp', 's_cbranch', 's_branch', 's_waitcnt', 's_nop', 's_barrier', 's_sleep', 's_setprio', 's_endpgm', 's_bitcmp')

class Ins:
    def __init__(s, text):
        s.text = text
        t = text.split(';')[0].strip()
        s.label = None; s.mn = ''; s.rd = set(); s.wr = set(); s.kind = 'other'; s.target = None
        s.A = s.B = s.C = s.D = []; s.passes = 0; s.dpp = False; s.sdata = []
        if not t or t.startswith('.'):
            s.kind = 'meta'; return
        if t.endswith(':'):
            s.label = t[:-1]; s.kind = 'label'; return
        parts = t.split(None, 1)
        mn = s.mn = parts[0]
        rest = parts[1] if len(parts) > 1 else ''
        ops = [o.strip() for o in re.split(r',(?![^\[]*\])', rest)] if rest else []
        if ops:
            last = ops[-1].split()
            mods = last[1:]; ops[-1] = last[0] if last else ''
        else:
            mods = []
        s.mods = mods
        R = [regs_of(o) for o in ops]
        allr = lambda L: set(x for l in L for x in l)
        if mn.startswith('v_mfma'):
            s.kind = 'mfma'; s.D, s.A, s.B, s.C = R[0], R[1], R[2], R[3]
            s.passes = 8 if '32x32' in mn else 4
            s.wr = set(s.D); s.rd = allr(R[1:])
        elif mn.startswith('v_'):
            s.kind = 'valu'
            base = mn.replace('_e32', '').replace('_e64', '').replace('_dpp', '')
            if base in TRANS: s.kind = 'trans'
            s.dpp = mn.endswith('_dpp')
            s.wr = set(R[0]); s.rd = allr(R[1:])
            if 'permlane' in mn: s.wr = allr(R[:2]); s.rd = allr(R[:2])
            if base.startswith(('v_fmac', 'v_dot2c', 'v_writelane')): s.rd |= set(R[0])
            if base.startswith(('v_add_co', 'v_sub_co', 'v_addc_co', 'v_subb_co')):
                s.wr = allr(R[:2]); s.rd = allr(R[2:])
            if base == 'v_nop': s.kind = 'valu'
        elif mn.startswith('ds_'):
            if mn.startswith('ds_read') or '_rtn_' in mn or 'permute' in mn or 'swizzle' in mn:
                s.kind = 'dsr'; s.wr = set(R[0]); s.rd = allr(R[1:])
            else:
                s.kind = 'dsw'; s.rd = allr(R)
        elif mn.startswith(('buffer_', 'global_')):
            if 'lds' in mods:
                s.kind = 'dma'; s.rd = allr(R) | {('s', 'm0')}
            elif '_load' in mn:
                s.kind = 'vld'; s.wr = set(R[0]); s.rd = allr(R[1:])
            else:
                s.kind = 'vst'; s.rd = allr(R)
                if mn.startswith('buffer_'): data = R[0]
                else: data = R[1]
                if 'x3' in mn or 'x4' in mn or 'cmpswap_x2' in mn: s.sdata = data
        elif mn.startswith('s_'):
            if mn.startswith(('s_load', 's_memrealtime', 's_memtime', 's_buffer_load')):
                s.kind = 'smem'; s.wr = set(R[0]); s.rd = allr(R[1:])
            elif mn.startswith(('s_cbranch', 's_branch')):
                s.kind = 'branch'; s.target = ops[0]
            elif mn == 's_nop':
                s.kind = 'nop'; s.n = int(ops[0], 0)
            elif mn.startswith(NODST_S):
                s.kind = 'salu'; s.rd = allr(R)
            else:
                s.kind = 'salu'; s.wr = set(R[0]); s.rd = allr(R[1:])
                if 'saveexec' in mn: s.wr |= {('s', 'exec_lo'), ('s', 'exec_hi')}
    def ws(s):
        if s.kind in ('meta', 'label'): return 0
        if s.kind == 'nop': return s.n + 1
        return 1

def need(p, c):
    n = 0
    V = lambda S: set(x for x in S if x[0] in 'va')
    Sg = lambda S: set(x for x in S if x[0] == 's')
    pv = p.kind in ('valu', 'trans')
    cv = c.kind in ('valu', 'trans')
    if p.kind == 'mfma':
        D = set(p.D)
        big = {4: 8, 8: 12}[p.passes]
        if c.kind == 'mfma':
            if D & (set(c.A) | set(c.B)): n = max(n, big)
            if D & set(c.C):
                if not (c.C == p.D and c.passes == p.passes): n = max(n, big - 2)
            elif D & set(c.D): n = max(n, big)
        elif cv or c.kind in ('dsr', 'dsw', 'vld', 'vst', 'dma'):
            if D & (c.rd | c.wr): n = max(n, big)
        if cv or c.kind in ('dsr', 'vld'):
            if set(p.C) & c.wr: n = max(n, {4: 3, 8: 7}[p.passes])
    if pv:
        w = V(p.wr); sw = Sg(p.wr)
        if c.kind == 'mfma' and w & c.rd: n = max(n, 2)
        if cv and 'permlane' in c.mn and w & c.rd: n = max(n, 2)
        if cv and c.dpp and w & c.rd: n = max(n, 2)
        if cv and c.mn.startswith(('v_readlane', 'v_readfirstlane')) and w & c.rd: n = max(n, 1)
        if p.kind == 'trans' and (cv or c.kind == 'mfma') and w & (c.rd): n = max(n, 1 if cv else 2)
        if p.mn.startswith('v_dot2') and (cv or c.kind in ('dsw', 'vst', 'mfma')) and w & (c.rd | c.wr):
            if not (c.mn == p.mn and not (w & (c.rd - c.wr))): n = max(n, 3)
        if sw:
            if cv and sw & c.rd: n = max(n, 4 if c.mn.startswith(('v_readlane', 'v_writelane')) else 2)
            if c.kind in ('vld', 'vst', 'dma') and sw & c.rd: n = max(n, 5)
    if p.kind == 'salu' and ('s', 'm0') in p.wr and c.kind == 'dma': n = max(n, 1)
    if p.kind == 'vst' and p.sdata:
        if set(p.sdata) & c.wr: n = max(n, 2 if cv else 1)
    return n

def pad_hazards(lines, verbose=False):
    ins = [Ins(l) for l in lines]
    added = 0
    while True:
        lab = {x.label: i for i, x in enumerate(ins) if x.label}
        jumps = {}
        for i, x in enumerate(ins):
            if x.kind == 'branch': jumps.setdefault(lab[x.target], []).append(i)
        fix = None
        for i, c in enumerate(ins):
            if c.kind in ('meta', 'label', 'nop', 'branch'): continue
            worst = 0; why = None
            stack = [(i, 0)]; seen = {}
            while stack:
                j, d = stack.pop()
                preds = []
                if j > 0 and not (ins[j-1].mn in ('s_branch', 's_endpgm')): preds.append(j - 1)
                if ins[j].label: preds += jumps.get(j, [])
                for q in preds:
                    p = ins[q]
                    if p.kind not in ('meta', 'label'):
                        r = need(p, c)
                        if r - d > worst: worst = r - d; why = p
                    nd = d + p.ws()
                    if nd < 13 and seen.get(q, 99) > nd:
                        seen[q] = nd; stack.append((q, nd))
            if worst > 0:
                fix = (i, worst, why); break
        if not fix: break
        i, k, why = fix
        if verbose: print(f"pad {k} before [{ins[i].text.strip()}] due to [{why.text.strip()}]")
        ins.insert(i, Ins(f"s_nop {k-1}"))
        added += 1
    return [x.text for x in ins], added

class Asm:
    def __init__(s):
        s.L = []; s.vm = []; s.lg = []; s.uid = 0
    def __call__(s, t):
        for l in t.strip().split('\n'):
            l = l.strip()
            if l: s.L.append(l)
    def lbl(s, p='L'):
        s.uid += 1; return f"{p}_{s.uid}"
    def vmem(s, t, tag, cond=False):
        s(t); s.vm.append((tag, cond))
    def wait_vm(s, *tags):
        idx = max((i for i, (t, c) in enumerate(s.vm) if t in tags), default=None)
        if idx is None: return
        n = sum(1 for t, c in s.vm[idx+1:] if not c)
        assert n < 64, n
        s(f"s_waitcnt vmcnt({n})")
        s.vm = s.vm[idx+1:]
    def drain_vm(s):
        s("s_waitcnt vmcnt(0)"); s.vm = []
    def check_vm(s):
        assert len(s.vm) <= 63, len(s.vm)
    def ds(s, t, tag):
        s(t); s.lg.append(tag)
    def wait_lg(s, *tags):
        idx = max((i for i, t in enumerate(s.lg) if t in tags), default=None)
        if idx is None: return
        n = len(s.lg) - idx - 1
        if n > 15: n = 15
        s(f"s_waitcnt lgkmcnt({n})")
        s.lg = s.lg[len(s.lg) - n:] if n else []
    def drain_lg(s):
        s("s_waitcnt lgkmcnt(0)"); s.lg = []
    def fork(s):
        return (list(s.vm), list(s.lg))
    def restore(s, st):
        s.vm, s.lg = list(st[0]), list(st[1])
```

```python
import sys, struct, math
from asmlib import Asm, vr, sr, pad_hazards

NAME = "parallel_sum__sliding_block__mixer_token_mlp__prompt"
def f32(x): return struct.unpack('<I', struct.pack('<f', x))[0]
def hx(x): return hex(x & 0xffffffff)

STATS = 0x0; FH = 0x8000; FQ = 0xA000; FO = 0xC000; FG = 0x10000; DBGT = 0x18000
HF = 0x40000; QF = 0x2C0000; KF = 0x540000; VF = 0x7C0000; OF = 0xA40000; GF = 0xCC0000
WS_END = GF + 54 * 40960
FH_ST, FQ_ST, FO_ST, FG_ST = 32, 32, 16, 128
OOB = 0x7f000000
REGION = 36864
MISC = 147456
LNT = MISC; LNP = 1296
CS = MISC + 12288
STL = CS + 512
NONL = STL + 64
CNT = NONL + 16
SCR = CS + 1024
LDS_BYTES = 163840
sX, sWQ, sWS, sW1, sW2, sWO, sOUT, sB1, sB2, sDBG = 4, 8, 12, 16, 20, 24, 28, 32, 36, 40
sWave, sXcd, sIdx, sR, sC, sLn = 44, 45, 46, 47, 48, 49
sNon = 50
sXo, sWo, sM0 = 52, 53, 54
sT = list(range(55, 64))
sOnes = 96; sCnt = 97; sMk = 98
sU = 100; sU2 = 101
sTS = 64
SPIN = 20000

class Cfg:
    prof = False

def gen(cfg):
    a = Asm()
    stamps = []
    def stamp(name):
        if not cfg.prof: return
        k = cfg.names.setdefault(name, len(cfg.names)); assert k < 16
        a(f"""s_waitcnt lgkmcnt(0)
        s_memrealtime s[{sU}:{sU2}]
        s_waitcnt lgkmcnt(0)
        v_mov_b32 v15, s{sU}
        v_mov_b32 v14, s{cfg.sStamp}""")
        a.lg = []
        a.vmem(f"buffer_store_dword v15, v14, {sr(sWS,4)}, 0 offen offset:{k*4}", 'stamp', cond=True)

    vL = 1
    a(f"""s_cmp_ge_u32 s2, 256
    s_cbranch_scc1 L_end
    s_load_dwordx2 {sr(sX,2)}, s[0:1], 0
    s_load_dwordx2 {sr(sWQ,2)}, s[0:1], 8
    s_load_dwordx2 {sr(sWS,2)}, s[0:1], 80
    s_load_dwordx2 {sr(sDBG,2)}, s[0:1], 72
    s_load_dwordx2 {sr(sW1,2)}, s[0:1], 32
    s_load_dwordx2 {sr(sW2,2)}, s[0:1], 48
    s_load_dwordx2 {sr(sWO,2)}, s[0:1], 16
    s_load_dwordx2 {sr(sOUT,2)}, s[0:1], 64
    s_load_dwordx2 {sr(sB1,2)}, s[0:1], 40
    s_load_dwordx2 {sr(sB2,2)}, s[0:1], 56
    v_lshrrev_b32 v2, 6, v0
    v_and_b32 v{vL}, 63, v0
    v_readfirstlane_b32 s{sWave}, v2""")
    for s_, n in ((sX, 2621440), (sWQ, 2457600), (sWS, WS_END), (sDBG, 256), (sW1, 7077888), (sW2, 7077888),
                  (sWO, 819200), (sOUT, 2621440), (sB1, 3456), (sB2, 4096)):
        a(f"s_mov_b32 s{s_+2}, {n}\ns_mov_b32 s{s_+3}, 0x20000")
    t0, t1, t2, t3, t4, t5, t6, t7, t8 = sT
    a(f"""s_and_b32 s{sXcd}, s2, 7
    s_lshr_b32 s{sIdx}, s2, 3
    s_lshr_b32 s{t0}, s{sXcd}, 1
    s_lshl_b32 s{t0}, s{t0}, 2
    s_and_b32 s{t1}, s{sIdx}, 3
    s_add_u32 s{sR}, s{t0}, s{t1}
    s_and_b32 s{t0}, s{sXcd}, 1
    s_lshl_b32 s{t0}, s{t0}, 3
    s_lshr_b32 s{t1}, s{sIdx}, 2
    s_add_u32 s{sC}, s{t0}, s{t1}
    s_lshl_b32 s{t0}, s{sXcd}, 5
    s_add_u32 s{sLn}, s{t0}, s{sIdx}
    s_mov_b32 s{sOnes}, 0x3f803f80""")
    if cfg.prof:
        cfg.sStamp = 63; sT.remove(63) if 63 in sT else None
        a(f"""s_lshl_b32 s63, s2, 3
        s_add_u32 s63, s63, s{sWave}
        s_lshl_b32 s63, s63, 6
        s_add_u32 s63, s63, {DBGT}""")
    vLN = 96
    a(f"""s_lshl_b32 s{t0}, s{sLn}, 3
    s_add_u32 s{t0}, s{t0}, s{sWave}
    s_mul_i32 s{t0}, s{t0}, 1280
    v_lshlrev_b32 v2, 2, v{vL}""")
    vDX, vDW = 152, 154
    a(f"""v_lshrrev_b32 v3, 3, v{vL}
    v_lshrrev_b32 v4, 4, v{vL}
    v_and_b32 v5, 7, v{vL}
    v_xor_b32 v5, v5, v4
    v_mul_u32_u24 v3, 1280, v3
    v_lshl_add_u32 v{vDX}, v5, 4, v3
    v_xor_b32 v3, 64, v{vDX}
    v_add_u32 v{vDX+1}, {8*1280-1024}, v3
    v_bfe_u32 v5, v{vL}, 2, 2
    v_xor_b32 v5, v5, v4
    v_mul_u32_u24 v3, 3840, v4
    v_lshl_add_u32 v3, v5, 6, v3
    v_and_b32 v5, 3, v{vL}
    v_lshl_add_u32 v{vDW}, v5, 4, v3
    v_add_u32 v{vDW+1}, {4*3840-1024}, v{vDW}
    s_lshl_b32 s{t1}, s{sR}, 3
    s_add_u32 s{t1}, s{t1}, s{sWave}
    s_mul_i32 s{sXo}, s{t1}, {16*1280}
    s_mul_i32 s{t1}, s{sWave}, {8*3840}
    s_lshl_b32 s{t2}, s{sC}, 8
    s_add_u32 s{sWo}, s{t1}, s{t2}
    s_cmp_ge_u32 s{sC}, 15
    s_cselect_b32 s{sXo}, {hx(0x70000000)}, s{sXo}
    s_cselect_b32 s{sWo}, {hx(0x70000000)}, s{sWo}
    s_lshl_b32 s{sM0}, s{sWave}, 12
    s_waitcnt lgkmcnt(0)""")
    for i in range(5):
        a.vmem(f"buffer_load_dword v{vLN+i}, v2, {sr(sX,4)}, s{t0} offen offset:{256*i}", 'ln')
    def dmaA(st):
        slot = st % 4
        a(f"s_add_u32 m0, s{sM0}, {slot*32768}")
        a(f"s_nop 0")
        a.vmem(f"buffer_load_dwordx4 v{vDX}, {sr(sX,4)}, s{sXo} offen lds", f'A{st}')
        a.vmem(f"buffer_load_dwordx4 v{vDX+1}, {sr(sX,4)}, s{sXo} offen offset:1024 lds", f'A{st}')
        a(f"s_add_u32 m0, s{sM0}, {slot*32768+2048}")
        a(f"s_add_u32 s{sXo}, s{sXo}, 128")
        a.vmem(f"buffer_load_dwordx4 v{vDW}, {sr(sWQ,4)}, s{sWo} offen lds", f'A{st}')
        a.vmem(f"buffer_load_dwordx4 v{vDW+1}, {sr(sWQ,4)}, s{sWo} offen offset:1024 lds", f'A{st}')
        a(f"s_add_u32 s{sWo}, s{sWo}, {64*3840}")
    for st in range(4): dmaA(st)
    stamp('start')
    sk = a.lbl()
    a(f"""s_cmp_lt_u32 s2, 8
    s_cselect_b32 s{t1}, s{sWave}, 1
    s_cmp_eq_u32 s{t1}, 0
    s_cbranch_scc0 {sk}
    s_memrealtime s[{sU}:{sU2}]
    v_mov_b32 v6, 0
    v_mov_b32 v7, 0
    v_mov_b32 v3, 0
    s_waitcnt lgkmcnt(0)
    s_or_b32 s{sU}, s{sU}, 1
    v_mov_b32 v4, s{sU}
    v_mov_b32 v5, s{sU2}
    s_mov_b64 exec, 1""")
    a.vmem(f"buffer_atomic_cmpswap_x2 v[4:7], v3, {sr(sDBG,4)}, 0 offen sc1", 'cas', cond=True)
    a(f"""s_mov_b64 exec, -1
    {sk}:""")
    vXA, vWA = 128, 136
    sSr, sNc = t7, t6
    a(f"""s_and_b32 s{sSr}, s{sWave}, 3
    s_lshr_b32 s{sNc}, s{sWave}, 2
    v_and_b32 v3, 15, v{vL}
    v_lshrrev_b32 v4, 5, v{vL}
    v_bfe_u32 v5, v{vL}, 4, 1
    s_lshl_b32 s{t1}, s{sSr}, 13
    v_lshlrev_b32 v6, 12, v5
    v_lshl_add_u32 v6, v3, 7, v6
    v_add_u32 v6, s{t1}, v6
    v_lshrrev_b32 v7, 1, v3
    v_xor_b32 v7, v7, v4""")
    a(f"""v_lshrrev_b32 v8, 2, v3
    v_lshlrev_b32 v9, 12, v4
    v_lshl_add_u32 v9, v8, 8, v9
    v_lshl_add_u32 v9, v5, 5, v9
    v_and_b32 v10, 3, v{vL}
    v_lshl_add_u32 v9, v10, 3, v9
    v_add_u32 v9, 2048, v9
    s_lshl_b32 s{t1}, s{sNc}, 1
    v_xor_b32 v10, s{t1}, v8
    v_lshl_add_u32 v11, v10, 6, v9
    v_xor_b32 v10, 1, v10
    v_lshl_add_u32 v12, v10, 6, v9""")
    for u in range(4):
        a(f"""s_add_u32 s{t1}, s{sSr}, {u}
        s_and_b32 s{t1}, s{t1}, 3
        s_lshl_b32 s{t2}, s{t1}, 1
        s_lshl_b32 s{t1}, s{t1}, 13
        v_xor_b32 v10, s{t2}, v7
        v_lshl_add_u32 v{vXA+u}, v10, 4, v6
        v_add_u32 v{vWA+2*u}, s{t1}, v11
        v_add_u32 v{vWA+2*u+1}, s{t1}, v12
        v_add_u32 v{vXA+4+u}, 0x10000, v{vXA+u}
        v_add_u32 v{vWA+8+2*u}, 0x10000, v{vWA+2*u}
        v_add_u32 v{vWA+8+2*u+1}, 0x10000, v{vWA+2*u+1}""")
    vCS = 156
    a(f"""v_mov_b32 v{vCS}, 0
    v_mov_b32 v{vCS+1}, 0
    v_lshlrev_b32 v13, 3, v{vL}""")
    a(f"v_add_u32 v13, {CS}, v13")
    a.ds(f"ds_write_b64 v13, {vr(vCS,2)}", 'z')
    a(f"v_mov_b32 v13, {CNT}")
    a.ds(f"ds_write_b64 v13, {vr(vCS,2)}", 'z')
    a.ds(f"ds_write_b64 v13, {vr(vCS,2)} offset:8", 'z')
    x = list(range(102, 112)); vS, vT_, vM, vR1 = 112, 113, 114, 115
    def allred(v, t):
        for m in ("quad_perm:[1,0,3,2]", "quad_perm:[2,3,0,1]", "row_half_mirror", "row_mirror"):
            a(f"v_add_f32_dpp v{v}, v{v}, v{v} {m} row_mask:0xf bank_mask:0xf")
        for p in ("v_permlane16_swap_b32", "v_permlane32_swap_b32"):
            a(f"v_mov_b32 v{t}, v{v}\n{p} v{v}, v{t}\nv_add_f32 v{v}, v{v}, v{t}")
    def sum10(dst):
        a(f"v_add_f32 v{dst}, v{x[0]}, v{x[1]}\nv_add_f32 v{vT_}, v{x[2]}, v{x[3]}")
        for i in range(4, 10, 2):
            a(f"v_add_f32 v{dst}, v{dst}, v{x[i]}\nv_add_f32 v{vT_}, v{vT_}, v{x[i+1]}")
        a(f"v_add_f32 v{dst}, v{dst}, v{vT_}")
    def sq10(dst):
        a(f"v_mul_f32 v{dst}, v{x[0]}, v{x[0]}\nv_mul_f32 v{vT_}, v{x[1]}, v{x[1]}")
        for i in range(2, 10, 2):
            a(f"v_fmac_f32 v{dst}, v{x[i]}, v{x[i]}\nv_fmac_f32 v{vT_}, v{x[i+1]}, v{x[i+1]}")
        a(f"v_add_f32 v{dst}, v{dst}, v{vT_}")
    a(f"s_mov_b32 s{t1}, {hx(f32(1.0/640))}\ns_mov_b32 s{t2}, {hx(f32(1e-5))}")
    a.wait_vm('ln')
    for i in range(5):
        a(f"v_lshlrev_b32 v{x[2*i]}, 16, v{vLN+i}\nv_and_b32 v{x[2*i+1]}, 0xffff0000, v{vLN+i}")
    for p in range(2):
        mean = vM if p == 0 else 116
        rs = vR1 if p == 0 else 117
        sum10(vS); allred(vS, vT_)
        a(f"v_mul_f32 v{mean}, s{t1}, v{vS}")
        for i in range(10): a(f"v_sub_f32 v{x[i]}, v{x[i]}, v{mean}")
        sq10(vS); allred(vS, vT_)
        a(f"v_mov_b32 v{vT_}, s{t2}\nv_fmac_f32 v{vT_}, s{t1}, v{vS}\nv_rsq_f32 v{rs}, v{vT_}")
        for i in range(10): a(f"v_mul_f32 v{x[i]}, v{x[i]}, v{rs}")
    for i in range(5): a(f"v_cvt_pk_bf16_f32 v{vLN+i}, v{x[2*i]}, v{x[2*i+1]}")
    a(f"""s_mul_i32 s{t1}, s{sWave}, {LNP}
    s_add_u32 s{t1}, s{t1}, {LNT}
    v_add_u32 v2, s{t1}, v2
    s_lshl_b32 s{t1}, s{sWave}, 3
    s_add_u32 s{t1}, s{t1}, {STL}
    v_mov_b32 v13, s{t1}""")
    for i in range(5): a.ds(f"ds_write_b32 v2, v{vLN+i} offset:{256*i}", 'z')
    a.ds(f"ds_write_b64 v13, {vr(vM,2)}", 'z')
    a(f"""v_lshrrev_b32 v4, 4, v{vL}
    v_and_b32 v5, 3, v{vL}
    v_mul_u32_u24 v2, {LNP}, v8
    v_lshl_add_u32 v2, v4, 5, v2
    v_lshl_add_u32 v2, v5, 3, v2
    s_lshl_b32 s{t0}, s{sWave}, 7
    s_add_u32 s{t0}, s{t0}, {LNT}
    v_add_u32 v2, s{t0}, v2
    v_lshlrev_b32 v3, 4, v3
    v_lshl_add_u32 v3, v4, 10, v3
    s_lshr_b32 s{t0}, s{sLn}, 2
    s_mul_i32 s{t0}, s{t0}, 40960
    s_and_b32 s{t1}, s{sLn}, 3
    s_lshl_b32 s{t1}, s{t1}, 8
    s_add_u32 s{t0}, s{t0}, s{t1}
    s_lshl_b32 s{t1}, s{sWave}, 12
    s_add_u32 s{t0}, s{t0}, s{t1}
    s_add_u32 s{t0}, s{t0}, {HF}
    s_add_u32 s{t1}, s{t0}, 32768
    s_cmp_lt_u32 s{sWave}, 2
    s_cselect_b32 s{t1}, s{t1}, {hx(OOB)}""")
    stamp('ln')

    sFs, sTd = 64, 65
    sKo, sHo = 66, 67
    sXm0 = 68
    sP, sDh = 69, 70
    vW1D, vHA, vW1T = 80, 84, 86
    vFHo = 90
    a(f"""s_lshr_b32 s{t2}, s{sXcd}, 1
    s_mul_i32 s{t2}, s{t2}, 27
    s_add_u32 s{t2}, s{t2}, s{sIdx}
    s_lshr_b32 s{sFs}, s{t2}, 2
    s_and_b32 s{t2}, s{t2}, 3
    s_and_b32 s{t3}, s{sXcd}, 1
    s_lshl_b32 s{t3}, s{t3}, 2
    s_add_u32 s{sTd}, s{t2}, s{t3}
    s_mul_i32 s{sKo}, s{sSr}, {32*3456}
    s_lshl_b32 s{t2}, s{sFs}, 7
    s_add_u32 s{sKo}, s{sKo}, s{t2}
    s_mul_i32 s{sHo}, s{sSr}, 40960
    s_mul_i32 s{t2}, s{sTd}, 5120
    s_add_u32 s{sHo}, s{sHo}, s{t2}
    s_add_u32 s{sHo}, s{sHo}, {HF}
    s_mul_i32 s{sXm0}, s{sSr}, {REGION}
    s_and_b32 s{sP}, s{sSr}, 1
    s_lshr_b32 s{sDh}, s{sSr}, 1
    v_lshrrev_b32 v4, 3, v{vL}
    v_mul_u32_u24 v4, 3456, v4
    v_bfe_u32 v5, v{vL}, 1, 2
    v_bfe_u32 v6, v{vL}, 4, 1
    v_xor_b32 v5, v5, v6
    v_lshl_add_u32 v4, v5, 5, v4
    v_and_b32 v5, 1, v{vL}
    v_lshl_add_u32 v{vW1D}, v5, 4, v4
    v_xor_b32 v4, 64, v{vW1D}
    v_add_u32 v{vW1D+1}, {8*3456-1024}, v4
    v_add_u32 v{vW1D+2}, {16*3456-2048}, v{vW1D}
    v_add_u32 v{vW1D+3}, {24*3456-3072}, v4
    v_lshlrev_b32 v4, 4, v{vL}
    s_mul_i32 s{t2}, s{sDh}, 3072
    v_add_u32 v{vHA}, s{t2}, v4
    s_xor_b32 s{t2}, s{sDh}, 1
    s_lshl_b32 s{t2}, s{t2}, 11
    v_add_u32 v{vHA+1}, s{t2}, v4
    v_lshrrev_b32 v4, 4, v{vL}
    v_lshl_add_u32 v5, v4, 3, v8
    v_lshlrev_b32 v5, 7, v5
    v_and_b32 v6, 3, v{vL}
    v_lshl_add_u32 v5, v6, 3, v5
    v_add_u32 v5, s{sXm0}, v5
    v_and_b32 v4, 1, v4
    v_lshrrev_b32 v6, 1, v8
    v_lshl_or_b32 v6, v4, 1, v6
    s_lshl_b32 s{t2}, s{sP}, 1
    v_xor_b32 v6, s{t2}, v6""")
    for q in range(4):
        a(f"v_xor_b32 v4, {q}, v6\nv_lshl_add_u32 v{vW1T+q}, v4, 5, v5")
    a(f"""v_lshrrev_b32 v4, 2, v{vL}
    v_and_b32 v5, 3, v{vL}
    v_lshl_add_u32 v4, v4, 4, v5
    s_lshl_b32 s{t2}, s{sSr}, 2
    v_add_u32 v4, s{t2}, v4
    v_mul_u32_u24 v4, {FH_ST}, v4
    v_add_u32 v{vFHo}, {FH}, v4""")
    vSTo = 91
    a(f"""s_lshl_b32 s{t2}, s{sR}, 2
    s_add_u32 s{t2}, s{t2}, s{sSr}
    s_lshl_b32 s{t2}, s{t2}, 9
    s_add_u32 s{t2}, s{t2}, {STATS}
    v_and_b32 v4, 31, v{vL}
    v_lshlrev_b32 v4, 4, v4
    v_add_u32 v{vSTo}, s{t2}, v4""")

    def poll_check(vp, voff, nreg, tagoff, mask=None, err=0):
        ok = a.lbl('ok'); lp = a.lbl('sp')
        ld = {2: 'dwordx2', 4: 'dwordx4'}[nreg]
        def cmp():
            a(f"v_cmp_ne_u64 vcc, {vr(vp+tagoff,2)}, {sr(sNon,2)}")
            a(f"s_and_b64 vcc, vcc, {mask if mask else 'exec'}")
        cmp()
        a(f"""s_cbranch_scc0 {ok}
        s_mov_b32 s{sCnt}, {SPIN}
        {lp}:
        s_sleep 2
        buffer_load_{ld} {vr(vp,nreg)}, v{voff}, {sr(sWS,4)}, 0 offen sc1
        s_waitcnt vmcnt(0)""")
        cmp()
        a(f"""s_cbranch_scc0 {ok}
        s_sub_u32 s{sCnt}, s{sCnt}, 1
        s_cbranch_scc0 {lp}
        v_mov_b32 v14, {16+4*err}
        v_mov_b32 v15, {0xE0+err}
        buffer_store_dword v15, v14, {sr(sDBG,4)}, 0 offen
        {ok}:""")

    def flag_store(soff_expr_sgpr, vtmp):
        a(f"""v_mov_b32 v{vtmp}, s{sNon}
        v_mov_b32 v{vtmp+1}, s{sNon+1}
        v_mov_b32 v{vtmp+2}, 0
        s_mov_b64 exec, 1""")
        a.vmem(f"buffer_store_dwordx2 {vr(vtmp,2)}, v{vtmp+2}, {sr(sWS,4)}, s{soff_expr_sgpr} offen sc1", 'flag', cond=True)
        a("s_mov_b64 exec, -1")

    def arrive_last(cntoff, n, soff_sgpr, vtmp):
        sk = a.lbl()
        a(f"""v_mov_b32 v{vtmp}, {CNT+cntoff}
        v_mov_b32 v{vtmp+1}, 1
        s_mov_b64 exec, 1
        ds_add_rtn_u32 v{vtmp+2}, v{vtmp}, v{vtmp+1}
        s_mov_b64 exec, -1
        s_waitcnt lgkmcnt(0)
        v_readfirstlane_b32 s{sU}, v{vtmp+2}
        s_cmp_eq_u32 s{sU}, {n-1}
        s_cbranch_scc0 {sk}""")
        a.lg = []
        flag_store(soff_sgpr, vtmp)
        a(f"{sk}:")

    def lds_sync(cntoff, n, vtmp, err):
        lp = a.lbl('ls'); ok = a.lbl('ok')
        a(f"""v_mov_b32 v{vtmp}, {CNT+cntoff}
        v_mov_b32 v{vtmp+1}, 1
        s_mov_b64 exec, 1
        ds_add_u32 v{vtmp}, v{vtmp+1}
        s_mov_b64 exec, -1
        s_mov_b32 s{sCnt}, {SPIN*20}
        {lp}:
        ds_read_b32 v{vtmp+2}, v{vtmp}
        s_waitcnt lgkmcnt(0)
        v_readfirstlane_b32 s{sU}, v{vtmp+2}
        s_cmp_ge_u32 s{sU}, {n}
        s_cbranch_scc1 {ok}
        s_sub_u32 s{sCnt}, s{sCnt}, 1
        s_cbranch_scc0 {lp}
        v_mov_b32 v14, {16+4*err}
        v_mov_b32 v15, {0xE0+err}
        buffer_store_dword v15, v14, {sr(sDBG,4)}, 0 offen
        {ok}:""")
        a.lg = []

    LAND = 96
    def b1_issue(n):
        slot = n % 4
        a(f"s_add_u32 m0, s{sXm0}, {slot*4096}")
        L = LAND + 20 * slot
        for b in range(5):
            va, im = (vHA, b * 1024) if b < 2 else (vHA + 1, (b - 2) * 1024)
            a.vmem(f"buffer_load_dwordx4 {vr(L+4*b,4)}, v{va}, {sr(sWS,4)}, s{sHo} offen offset:{im} sc1", f'B{n}')
        for i in range(4):
            a.vmem(f"buffer_load_dwordx4 v{vW1D+i}, {sr(sW1,4)}, s{sKo} offen offset:{1024*i} lds", f'B{n}')
        a(f"s_add_u32 s{sHo}, s{sHo}, {4*40960}\ns_add_u32 s{sKo}, s{sKo}, {4*32*3456}")

    ACC = 16; FR = 48
    vST, vFHp = 8, 12
    def readsA(st, u):
        buf = FR + 12 * ((4 * st + u) & 1)
        slot = st % 4; hi = slot >> 1; lo = (slot & 1) * 32768
        tag = f'r{st}_{u}'
        a.ds(f"ds_read_b128 {vr(buf,4)}, v{vXA+4*hi+u} offset:{lo}", tag)
        for e in range(2):
            for j in range(2):
                a.ds(f"ds_read_b64_tr_b16 {vr(buf+4+4*e+2*j,2)}, v{vWA+8*hi+2*u+e} offset:{lo+1024*j}", tag)
    def mfmaA(st, u, vmode):
        buf = FR + 12 * ((4 * st + u) & 1)
        for e in range(2):
            d = vr(ACC + 16 * e, 16); c = '0' if (st == 0 and u == 0) else d
            A, B = (vr(buf + 4 + 4 * e, 4), vr(buf, 4)) if not vmode else (vr(buf, 4), vr(buf + 4 + 4 * e, 4))
            a(f"v_mfma_f32_32x32x16_bf16 {d}, {A}, {B}, {c}")
            if u == 0:
                for k in range(4): a(f"v_dot2c_f32_bf16 v{vCS+e}, s{sOnes}, v{buf+4+4*e+k}")
    def phaseA(vmode):
        a.wait_vm('A0'); a.drain_lg(); a("s_barrier")
        stamp('b0')
        readsA(0, 0)
        for q in range(2):
            for j in range(2):
                a.ds(f"ds_read_b64_tr_b16 {vr(100+4*q+2*j,2)}, v2 offset:{j*4*LNP+1024*q}", 'ht')
        a.wait_lg('ht')
        a.vmem(f"buffer_store_dwordx4 {vr(100,4)}, v3, {sr(sWS,4)}, s{t0} offen sc1", 'hst')
        a.vmem(f"buffer_store_dwordx4 {vr(104,4)}, v3, {sr(sWS,4)}, s{t1} offen sc1", 'hst')
        for st in range(10):
            for u in range(3):
                readsA(st, u + 1)
                a.wait_lg(f'r{st}_{u}')
                mfmaA(st, u, vmode)
                if st == 9 and u == 0:
                    a(f"""v_and_b32 v4, 31, v{vL}
                    s_lshl_b32 s{t2}, s{sNc}, 8
                    s_add_u32 s{t2}, s{t2}, {CS}
                    v_lshl_add_u32 v4, v4, 2, s{t2}""")
                    a.ds(f"ds_add_f32 v4, v{vCS}", 'cs')
                    a.ds(f"ds_add_f32 v4, v{vCS+1} offset:128", 'cs')
            a.drain_lg()
            if st < 9: a.wait_vm(f'A{st+1}')
            else: a.wait_vm('pol')
            a("s_barrier")
            b = st + 1
            if st + 4 < 10: dmaA(st + 4)
            if st < 9: readsA(st + 1, 0)
            mfmaA(st, 3, vmode)
            if b == 1:
                sk = a.lbl(); a(f"s_cmp_eq_u32 s{sWave}, 0\ns_cbranch_scc0 {sk}\nv_mov_b32 v6, 0")
                a.vmem(f"buffer_load_dwordx2 v[4:5], v6, {sr(sDBG,4)}, 0 offen sc1", 'non', cond=True)
                a(f"{sk}:")
            if b == 3:
                sk = a.lbl(); ok = a.lbl(); lp = a.lbl()
                a(f"s_cmp_eq_u32 s{sWave}, 0\ns_cbranch_scc0 {sk}")
                st_ = a.fork()
                a.wait_vm('non')
                a(f"""s_mov_b32 s{sCnt}, {SPIN}
                {lp}:
                v_readfirstlane_b32 s{sNon}, v4
                v_readfirstlane_b32 s{sNon+1}, v5
                s_cmp_lg_u32 s{sNon}, 0
                s_cbranch_scc1 {ok}
                s_sleep 2
                buffer_load_dwordx2 v[4:5], v6, {sr(sDBG,4)}, 0 offen sc1
                s_waitcnt vmcnt(0)
                s_sub_u32 s{sCnt}, s{sCnt}, 1
                s_cbranch_scc0 {lp}
                {ok}:
                v_mov_b32 v6, {NONL}
                ds_write_b64 v6, v[4:5]
                v_lshlrev_b32 v7, 3, v{vL}
                v_and_b32 v7, 63, v7
                v_add_u32 v7, {STL}, v7
                ds_read_b64 v[108:109], v7
                v_mov_b32 v110, v4
                v_mov_b32 v111, v5
                v_lshlrev_b32 v7, 4, v{vL}
                s_lshl_b32 s{t2}, s{sLn}, 7
                s_add_u32 s{t2}, s{t2}, {STATS}
                s_waitcnt lgkmcnt(0)
                s_mov_b64 exec, 0xff
                buffer_store_dwordx4 v[108:111], v7, {sr(sWS,4)}, s{t2} offen sc1
                s_mov_b64 exec, -1
                {sk}:""")
                a.restore(st_)
            if b == 4:
                sk = a.lbl(); a(f"s_cmp_eq_u32 s{sWave}, 0\ns_cbranch_scc0 {sk}")
                assert not any(t == 'hst' for t, c in a.vm)
                a(f"s_mul_i32 s{t2}, s{sLn}, {FH_ST}\ns_add_u32 s{t2}, s{t2}, {FH}")
                flag_store(t2, 4)
                a(f"{sk}:\nv_mov_b32 v7, {NONL}")
                a.ds("ds_read_b64 v[4:5], v7", 'nl')
            if b == 5:
                a(f"v_readfirstlane_b32 s{sNon}, v4\nv_readfirstlane_b32 s{sNon+1}, v5")
            if b == 8:
                a.vmem(f"buffer_load_dwordx4 {vr(vST,4)}, v{vSTo}, {sr(sWS,4)}, 0 offen sc1", 'pol')
                a.vmem(f"buffer_load_dwordx2 {vr(vFHp,2)}, v{vFHo}, {sr(sWS,4)}, 0 offen sc1", 'pol')
        stamp('aend')
        sk = a.lbl()
        a(f"""s_cmp_lt_u32 s{sIdx}, 27
        s_cselect_b32 s{t2}, s{sWave}, 7
        s_cmp_lt_u32 s{t2}, 4
        s_cbranch_scc0 {sk}""")
        poll_check(vFHp, vFHo, 2, 0, err=0)
        st_ = a.fork()
        for n in range(4): b1_issue(n)
        a.restore(st_)
        a(f"{sk}:")
        a(f"s_cmp_ge_u32 s{sC}, 15\ns_cbranch_scc1 L_roles")
        poll_check(vST, vSTo, 4, 2, err=1)
        T = 48
        a(f"s_lshl_b32 s{t2}, s{sR}, 2\ns_add_u32 s{t2}, s{t2}, s{sSr}\ns_mul_i32 s{t2}, s{t2}, 40960")
        if not vmode:
            a(f"""v_lshrrev_b32 v4, 5, v{vL}
            s_lshl_b32 s{t3}, s{sNc}, 8
            s_add_u32 s{t3}, s{t3}, {CS}
            v_lshl_add_u32 v5, v4, 4, s{t3}""")
            for e in range(2):
                for i in range(4):
                    a.ds(f"ds_read_b128 {vr(T+16*e+4*i,4)}, v5 offset:{(32*e+8*i)*4}", f'cs{e}{i}')
            qs = (20 ** -0.5) * math.log2(math.e)
            a(f"""s_cmp_lt_u32 s{sC}, 5
            s_cselect_b32 s{t3}, {hx(f32(qs))}, 1.0
            s_cselect_b32 s{t4}, 0, 5
            s_cselect_b32 s{t5}, 0, {KF-QF}
            v_mul_f32 v{vST+1}, s{t3}, v{vST+1}
            s_sub_u32 s{t4}, s{sC}, s{t4}
            s_lshl_b32 s{t4}, s{t4}, 1
            s_add_u32 s{t4}, s{t4}, s{sNc}
            s_lshl_b32 s{t4}, s{t4}, 12
            s_add_u32 s{t2}, s{t2}, s{t4}
            s_add_u32 s{t2}, s{t2}, s{t5}
            s_add_u32 s{t2}, s{t2}, {QF}
            v_and_b32 v5, 31, v{vL}
            v_lshlrev_b32 v5, 4, v5
            v_lshl_add_u32 v5, v4, 9, v5""")
            for e in range(2):
                for pr in range(2):
                    for i in (2 * pr, 2 * pr + 1):
                        a.wait_lg(f'cs{e}{i}')
                        for k in range(4):
                            r_ = ACC + 16 * e + 4 * i + k
                            a(f"v_fma_f32 v{r_}, -v{vST}, v{T+16*e+4*i+k}, v{r_}")
                        for k in range(4):
                            r_ = ACC + 16 * e + 4 * i + k
                            a(f"v_mul_f32 v{r_}, v{vST+1}, v{r_}")
                    o = T + 16 * e + 8 * pr; r0 = ACC + 16 * e + 8 * pr
                    for k in range(4): a(f"v_cvt_pk_bf16_f32 v{o+k}, v{r0+2*k}, v{r0+2*k+1}")
                    a(f"v_permlane32_swap_b32 v{o}, v{o+2}\nv_permlane32_swap_b32 v{o+1}, v{o+3}")
                    a.vmem(f"buffer_store_dwordx4 {vr(o,4)}, v5, {sr(sWS,4)}, s{t2} offen offset:{(4*e+2*pr)*512} sc1", 'qst', cond=True)
        else:
            a(f"""v_lshrrev_b32 v4, 5, v{vL}
            v_cmp_eq_u32 vcc, 0, v4
            s_lshl_b32 s{t3}, s{sWave}, 8
            s_add_u32 s{t3}, s{t3}, {SCR}
            v_lshl_add_u32 v6, v{vL}, 2, s{t3}
            v_cndmask_b32 v7, v{vST+1}, v{vST}, vcc
            v_lshl_add_u32 v5, v4, 4, s{t3}""")
            a.ds(f"ds_write_b32 v6, v7", 'sw')
            a(f"""v_and_b32 v6, 31, v{vL}
            s_lshl_b32 s{t3}, s{sNc}, 8
            s_add_u32 s{t3}, s{t3}, {CS}
            v_lshl_add_u32 v7, v6, 2, s{t3}""")
            a.ds(f"ds_read_b32 v12, v7", 'c0'); a.ds(f"ds_read_b32 v13, v7 offset:128", 'c0')
            for i in range(4):
                a.ds(f"ds_read_b128 {vr(T+4*i,4)}, v5 offset:{32*i}", f'm{i}')
                a.ds(f"ds_read_b128 {vr(T+16+4*i,4)}, v5 offset:{128+32*i}", f'm{i}')
            a(f"""s_sub_u32 s{t4}, s{sC}, 10
            s_lshl_b32 s{t4}, s{t4}, 1
            s_add_u32 s{t4}, s{t4}, s{sNc}
            s_lshl_b32 s{t4}, s{t4}, 10
            s_add_u32 s{t2}, s{t2}, s{t4}
            s_add_u32 s{t2}, s{t2}, {VF}
            s_add_u32 s{t3}, s{t2}, 20480
            v_mul_u32_u24 v5, 10240, v4
            v_lshl_add_u32 v5, v6, 4, v5""")
            for j in range(2):
                a.wait_lg(f'm{2*j+1}')
                for e in range(2):
                    r0 = ACC + 16 * e + 8 * j
                    for k in range(8): a(f"v_fma_f32 v{r0+k}, -v{T+8*j+k}, v{12+e}, v{r0+k}")
                    for k in range(8): a(f"v_mul_f32 v{r0+k}, v{T+16+8*j+k}, v{r0+k}")
                    for k in range(4): a(f"v_cvt_pk_bf16_f32 v{r0+k}, v{r0+2*k}, v{r0+2*k+1}")
                    a.vmem(f"buffer_store_dwordx4 {vr(r0,4)}, v5, {sr(sWS,4)}, s{t2 if j==0 else t3} offen offset:{512*e} sc1", 'qst', cond=True)
        a("s_branch L_roles")

    st0 = a.fork()
    a(f"s_cmp_ge_u32 s{sC}, 10\ns_cbranch_scc1 L_modeV")
    phaseA(False)
    a.restore(st0)
    a("L_modeV:")
    phaseA(True)
    a("L_roles:")
    sFQo = t8 if not cfg.prof else t5
    a(f"""s_mul_i32 s{t2}, s{sR}, 15
    s_add_u32 s{t2}, s{t2}, s{sC}
    s_mul_i32 s{t2}, s{t2}, {FQ_ST}
    s_add_u32 s{sFQo}, s{t2}, {FQ}
    s_cmp_ge_u32 s{sC}, 15
    s_cselect_b32 s{sFQo}, {hx(OOB)}, s{sFQo}
    s_cmp_ge_u32 s{sWave}, 4
    s_cbranch_scc1 L_Y""")
    stamp('epi')

    sI, sTc = 71, 72
    sW2o, sGo, sOo, sWOo = 73, 74, 75, 76
    vW2D, vG, vW2T, vWOm, vWOt, vWOT, vO, vXo, vEx = 16, 20, 22, 26, 31, 36, 37, 41, 42
    a(f"""s_lshr_b32 s{t2}, s{sXcd}, 1
    s_lshl_b32 s{t2}, s{t2}, 3
    s_and_b32 s{t3}, s{sIdx}, 7
    s_add_u32 s{sI}, s{t2}, s{t3}
    s_and_b32 s{t2}, s{sXcd}, 1
    s_lshl_b32 s{t2}, s{t2}, 2
    s_lshr_b32 s{t3}, s{sIdx}, 3
    s_add_u32 s{sTc}, s{t2}, s{t3}
    s_lshl_b32 s{sW2o}, s{sWave}, 17
    s_lshl_b32 s{t2}, s{sI}, 7
    s_add_u32 s{sW2o}, s{sW2o}, s{t2}
    s_mul_i32 s{sGo}, s{sWave}, 40960
    s_mul_i32 s{t2}, s{sTc}, 5120
    s_add_u32 s{sGo}, s{sGo}, s{t2}
    s_add_u32 s{sGo}, s{sGo}, {GF}
    s_mul_i32 s{sOo}, s{sI}, 81920
    s_mul_i32 s{t2}, s{sWave}, 5120
    s_add_u32 s{sOo}, s{sOo}, s{t2}
    s_add_u32 s{sOo}, s{sOo}, {OF}
    s_mul_i32 s{sWOo}, s{sWave}, {160*1280}
    s_mul_i32 s{t2}, s{sTc}, 160
    s_add_u32 s{sWOo}, s{sWOo}, s{t2}
    v_lshrrev_b32 v4, 3, v{vL}
    v_lshlrev_b32 v4, 12, v4
    v_bfe_u32 v5, v{vL}, 1, 2
    v_lshrrev_b32 v6, 4, v{vL}
    v_xor_b32 v5, v5, v6
    v_lshl_add_u32 v4, v5, 5, v4
    v_and_b32 v5, 1, v{vL}
    v_lshl_add_u32 v{vW2D}, v5, 4, v4""")
    for i in range(1, 4): a(f"v_add_u32 v{vW2D+i}, {i*(32768-1024)}, v{vW2D}")
    a(f"""v_lshlrev_b32 v{vG}, 4, v{vL}
    v_add_u32 v{vG+1}, 4096, v{vG}
    v_bfe_u32 v7, v{vL}, 2, 2
    v_lshl_add_u32 v4, v6, 2, v7
    v_and_b32 v5, 3, v{vL}
    v_lshlrev_b32 v5, 3, v5
    v_add_u32 v5, s{sXm0}, v5
    v_mul_u32_u24 v8, 160, v4
    v_add_u32 v{vWOT}, v8, v5
    v_lshl_add_u32 v5, v4, 7, v5
    v_bfe_u32 v4, v4, 1, 2""")
    for b in range(4):
        a(f"""s_add_u32 s{t2}, s{sWave}, {b}
        s_and_b32 s{t2}, s{t2}, 3
        v_xor_b32 v8, s{t2}, v4
        v_lshl_add_u32 v{vW2T+b}, v8, 5, v5
        s_mul_i32 s{t2}, s{t2}, 20480
        v_add_u32 v{vO+b}, s{t2}, v{vG}""")
    for i in range(5):
        im = 1024 * i if i < 4 else 0
        a(f"""v_add_u32 v4, {64*i}, v{vL}
        v_mul_u32_u24 v5, 6554, v4
        v_lshrrev_b32 v5, 16, v5
        v_mul_u32_u24 v6, 10, v5
        v_sub_u32 v6, v4, v6
        v_lshlrev_b32 v6, 4, v6
        v_lshrrev_b32 v7, 4, v5
        v_bfe_u32 v8, v5, 2, 2
        v_and_b32 v9, 3, v5
        v_lshrrev_b32 v10, 1, v8
        v_mul_u32_u24 v10, 20, v10
        v_lshl_add_u32 v10, v7, 3, v10
        v_and_b32 v11, 1, v8
        v_lshl_add_u32 v10, v11, 2, v10
        v_add_u32 v10, v10, v9
        v_mul_u32_u24 v10, 1280, v10
        v_add_u32 v10, v10, v6
        v_subrev_u32 v{vWOm+i}, {im}, v10
        v_lshl_add_u32 v10, v8, 1, v7
        v_mul_u32_u24 v10, 20, v10
        v_add3_u32 v10, v10, v9, 16
        v_mul_u32_u24 v10, 1280, v10
        v_add_u32 v10, v10, v6
        v_subrev_u32 v{vWOt+i}, {im}, v10""")
    a(f"""s_lshl_b32 s{t2}, s{sI}, 2
    s_add_u32 s{t2}, s{t2}, s{sWave}
    s_lshl_b32 s{t2}, s{t2}, 4
    v_and_b32 v4, 15, v{vL}
    v_add_u32 v4, s{t2}, v4
    v_lshlrev_b32 v46, 1, v4
    v_mul_u32_u24 v4, 1280, v4
    v_lshrrev_b32 v5, 4, v{vL}
    v_lshl_add_u32 v4, v5, 3, v4
    s_mul_i32 s{t2}, s{sTc}, 160
    v_add_u32 v{vXo}, s{t2}, v4
    v_add_u32 v{vEx}, s{sXm0}, v{vG}""")
    a(f"s_cmp_lt_u32 s{sIdx}, 27\ns_cbranch_scc1 L_B1")
    a.drain_vm()
    arrive_last(0, 8, sFQo, 4)
    a("s_branch L_C0")
    a("L_B1:")
    a.vm = [(f'B{n}', False) for n in range(4) for _ in range(9)] + [('qst', True)] * 4
    a.lg = []
    vBias = 2
    a(f"""v_lshrrev_b32 v6, 4, v{vL}
    s_lshl_b32 s{t2}, s{sFs}, 1
    s_add_u32 s{t2}, s{t2}, s{sP}
    s_lshl_b32 s{t3}, s{t2}, 6
    v_lshl_add_u32 v6, v6, 3, s{t3}""")
    a.vmem(f"buffer_load_dwordx2 {vr(vBias,2)}, v6, {sr(sB1,4)}, 0 offen", 'bias')
    a.vmem(f"buffer_load_dwordx2 {vr(vBias+2,2)}, v6, {sr(sB1,4)}, 0 offen offset:32", 'bias')
    AC = 176
    def tr16(n, base, addrs, off, jstep, cnt, tag):
        for q in range(cnt):
            for j in range(2):
                ad, ex = addrs(q)
                a.ds(f"ds_read_b64_tr_b16 {vr(base+4*q+2*j,2)}, v{ad} offset:{off+ex+j*jstep}", tag)
    def b1_reads(n):
        a.wait_vm(f'B{n}')
        tr16(n, FR + 16 * (n & 1), lambda q: (vW1T + q, 0), (n % 4) * 4096, 512, 4, f'w{n}')
    b1_reads(0)
    for n in range(16):
        a.wait_lg(f'w{n}')
        if n + 1 < 16: b1_reads(n + 1)
        L = LAND + 20 * (n % 4); W = FR + 16 * (n & 1)
        for q in range(4):
            for b in range(5):
                d = vr(AC + 4 * (5 * q + b), 4)
                a(f"v_mfma_f32_16x16x32_bf16 {d}, {vr(W+4*q,4)}, {vr(L+4*b,4)}, {d if n else 0}")
        if n + 4 < 16: b1_issue(n + 4)
        if n == 2:
            a.wait_vm('qst')
            st_ = a.fork(); arrive_last(0, 8, sFQo, 8); a.vm = st_[0]
        a.check_vm()
    stamp('b1end')
    def w2_issue(n):
        slot = (n + 4) % 9
        a(f"s_add_u32 m0, s{sXm0}, {slot*4096}\ns_nop 0")
        for i in range(4):
            a.vmem(f"buffer_load_dwordx4 v{vW2D+i}, {sr(sW2,4)}, s{sW2o} offen offset:{1024*i} lds", f'W{n}')
        a(f"s_add_u32 s{sW2o}, s{sW2o}, {4*131072}")
    for n in range(5): w2_issue(n)
    def z(q, b): return (q - 2) * 5 + b if q >= 2 else 10 + 3 * q + (b - 2)
    for q in (2, 3, 0, 1):
        for b in range(5):
            if q < 2 and b < 2: continue
            a.ds(f"ds_write_b128 v{vEx}, {vr(AC+4*(5*q+b),4)} offset:{z(q,b)*1024}", 'pw')
    a(f"""s_lshl_b32 s{t4}, s{sDh}, 10
    s_xor_b32 s{t2}, s{sWave}, 2
    s_mul_i32 s{t2}, s{t2}, {REGION}
    s_add_u32 s{t2}, s{t2}, s{t4}
    v_add_u32 v6, s{t2}, v{vG}
    s_xor_b32 s{t2}, s{sWave}, 1
    s_mul_i32 s{t2}, s{t2}, {REGION}
    v_add_u32 v7, s{t2}, v{vG}
    s_xor_b32 s{t2}, s{sWave}, 3
    s_mul_i32 s{t2}, s{t2}, {REGION}
    s_add_u32 s{t2}, s{t2}, s{t4}
    v_add_u32 v8, s{t2}, v{vG}""")
    a.drain_lg()
    lds_sync(4, 4, 10, err=2)
    RB = LAND
    for b in range(3):
        for q in range(2):
            k = 2 * b + q
            a.ds(f"ds_read_b128 {vr(RB+12*k,4)}, v6 offset:{(10+3*q+b)*1024}", f'p{k}')
            a.ds(f"ds_read_b128 {vr(RB+12*k+4,4)}, v7 offset:{(5*q+b)*1024}", f'p{k}')
            a.ds(f"ds_read_b128 {vr(RB+12*k+8,4)}, v8 offset:{(5*q+b+2)*1024}", f'p{k}')
    a.wait_vm('bias')
    BI = 48
    for q in range(2):
        a(f"""v_lshlrev_b32 v{BI+4*q}, 16, v{vBias+2*q}
        v_and_b32 v{BI+4*q+1}, 0xffff0000, v{vBias+2*q}
        v_lshlrev_b32 v{BI+4*q+2}, 16, v{vBias+2*q+1}
        v_and_b32 v{BI+4*q+3}, 0xffff0000, v{vBias+2*q+1}""")
    c0 = -2.0 * math.sqrt(2.0 / math.pi) * math.log2(math.e)
    a(f"""s_mov_b32 s{t2}, {hx(f32(c0*0.044715))}
    v_mov_b32 v9, {hx(f32(c0))}
    s_lshl_b32 s{t3}, s{sFs}, 1
    s_add_u32 s{t3}, s{t3}, s{sP}
    s_mul_i32 s{t3}, s{t3}, 40
    s_mul_i32 s{t4}, s{sTd}, 5
    s_add_u32 s{t3}, s{t3}, s{t4}
    s_mul_i32 s{t4}, s{sDh}, 3
    s_add_u32 s{t3}, s{t3}, s{t4}
    s_lshl_b32 s{t3}, s{t3}, 10
    s_add_u32 s{t3}, s{t3}, {GF}
    s_cmp_eq_u32 s{sDh}, 0
    s_cselect_b32 s{t4}, s{t3}, {hx(OOB)}""")
    for b in range(3):
        o = 56 + 4 * b
        for q in range(2):
            k = 2 * b + q
            a.wait_lg(f'p{k}')
            u_ = AC + 4 * (5 * q + b); p_ = RB + 12 * k
            for r_ in range(4): a(f"v_add_f32 v{u_+r_}, v{u_+r_}, v{BI+4*q+r_}")
            for r_ in range(4): a(f"v_add_f32 v{p_+r_}, v{p_+r_}, v{p_+4+r_}")
            for r_ in range(4): a(f"v_add_f32 v{u_+r_}, v{u_+r_}, v{p_+8+r_}")
            for r_ in range(4): a(f"v_add_f32 v{u_+r_}, v{u_+r_}, v{p_+r_}")
            for r_ in range(4): a(f"v_mul_f32 v{p_+r_}, v{u_+r_}, v{u_+r_}")
            for r_ in range(4): a(f"v_fma_f32 v{p_+r_}, v{p_+r_}, s{t2}, v9")
            for r_ in range(4): a(f"v_mul_f32 v{p_+r_}, v{p_+r_}, v{u_+r_}")
            for r_ in range(4): a(f"v_exp_f32 v{p_+r_}, v{p_+r_}")
            for r_ in range(4): a(f"v_add_f32 v{p_+r_}, 1.0, v{p_+r_}")
            for r_ in range(4): a(f"v_rcp_f32 v{p_+r_}, v{p_+r_}")
            for r_ in range(4): a(f"v_mul_f32 v{u_+r_}, v{u_+r_}, v{p_+r_}")
            a(f"v_cvt_pk_bf16_f32 v{o+2*q}, v{u_}, v{u_+1}\nv_cvt_pk_bf16_f32 v{o+2*q+1}, v{u_+2}, v{u_+3}")
        a.vmem(f"buffer_store_dwordx4 {vr(o,4)}, v{vG}, {sr(sWS,4)}, s{t3 if b<2 else t4} offen offset:{1024*b} sc1", 'gst')
    lds_sync(8, 4, 10, err=3)
    for n in range(5, 9): w2_issue(n)
    a.wait_vm('gst')
    a(f"""s_mul_i32 s{t2}, s{sTd}, 27
    s_add_u32 s{t2}, s{t2}, s{sFs}
    s_mul_i32 s{t2}, s{t2}, {FG_ST}
    s_add_u32 s{t2}, s{t2}, {FG}""")
    arrive_last(12, 4, t2, 10)
    stamp('gst')
    a("s_branch L_C1")
    a("L_C0:")
    a.vm = []
    for n in range(9): w2_issue(n)
    a("L_C1:")
    a.vm = [(f'W{n}', False) for n in range(9) for _ in range(4)]
    a.lg = []
    vXR, vB2 = 88, 47
    vXR = 2
    a(f"""s_mul_i32 s{t2}, s{sTc}, 27
    v_min_u32 v12, 26, v{vL}
    v_add_u32 v12, s{t2}, v12
    v_mul_u32_u24 v12, {FG_ST}, v12
    v_add_u32 v12, {FG}, v12""")
    a.vmem(f"buffer_load_dwordx2 v[48:49], v12, {sr(sWS,4)}, 0 offen sc1", 'pol')
    a.wait_vm('pol')
    poll_check(48, 12, 2, 0, err=4)
    stamp('gvis')
    def g_issue(n):
        L = LAND + 20 * (n % 4)
        for d in range(5):
            va, im = (vG, d * 1024) if d < 4 else (vG + 1, 0)
            a.vmem(f"buffer_load_dwordx4 {vr(L+4*d,4)}, v{va}, {sr(sWS,4)}, s{sGo} offen offset:{im} sc1", f'G{n}')
        a(f"s_add_u32 s{sGo}, s{sGo}, {4*40960}")
    WOOFF = [0, 5120, 10240, 16384, 24576]
    def wo_issue(m):
        vb = vWOm if m < 4 else vWOt
        a(f"s_add_u32 m0, s{sXm0}, {WOOFF[m]}")
        if m < 4: a(f"s_add_u32 s{t2}, s{sWOo}, {m*40*1280}")
        else: a(f"s_mov_b32 s{t2}, s{sWOo}")
        for i in range(4):
            a.vmem(f"buffer_load_dwordx4 v{vb+i}, {sr(sWO,4)}, s{t2} offen offset:{1024*i} lds", f'WO{m}')
        a(f"s_add_u32 m0, s{sXm0}, {WOOFF[m]+4096}\ns_nop 0")
        a.vmem(f"buffer_load_dwordx4 v{vb+4}, {sr(sWO,4)}, s{t2} offen lds", f'WO{m}')
    def o_issue(m):
        L = LAND + 20 * ((14 + m) % 4)
        for b in range(4):
            a.vmem(f"buffer_load_dwordx4 {vr(L+4*b,4)}, v{vO+b}, {sr(sWS,4)}, s{sOo} offen sc1", f'G{14+m}')
        a(f"s_add_u32 s{sOo}, s{sOo}, 1024")
    def c_reads(n):
        base = FR + 20 * (n & 1)
        if n < 14:
            a.wait_vm(f'W{n}')
            tr16(n, base, lambda q: (vW2T + q, 0), ((n + 4) % 9) * 4096, 2048, 4, f'w{n}')
        else:
            a.wait_vm(f'WO{n-14}')
            tr16(n, base, lambda q: (vWOT, 32 * q), WOOFF[n - 14], 2560, 5, f'w{n}')
    for n in range(4): g_issue(n)
    for d in range(5):
        a.vmem(f"buffer_load_dwordx2 {vr(vXR+2*d,2)}, v{vXo}, {sr(sX,4)}, 0 offen offset:{32*d}", 'xr')
    a.vmem(f"buffer_load_ushort v{vB2}, v46, {sr(sB2,4)}, 0 offen", 'xr')
    c_reads(0)
    for n in range(19):
        a.wait_lg(f'w{n}')
        if n + 9 < 14: w2_issue(n + 9)
        if n == 8:
            for m in range(3): wo_issue(m)
        if n == 10: wo_issue(3)
        if n == 12: wo_issue(4)
        if n == 8:
            a(f"""s_lshl_b32 s{t2}, s{sI}, 2
            s_add_u32 s{t2}, s{t2}, s{sWave}
            s_lshl_b32 s{t2}, s{t2}, 3
            v_and_b32 v12, 7, v{vL}
            v_add_u32 v12, s{t2}, v12
            v_mul_u32_u24 v12, {FO_ST}, v12
            v_add_u32 v12, {FO}, v12""")
            a.vmem(f"buffer_load_dwordx2 v[92:93], v12, {sr(sWS,4)}, 0 offen sc1", 'pol')
        if n + 1 < 19: c_reads(n + 1)
        a.wait_vm(f'G{n}')
        L = LAND + 20 * (n % 4); W = FR + 20 * (n & 1)
        for d in range(5):
            for b in range(4):
                dd = vr(AC + 4 * (4 * d + b), 4)
                A, B = (vr(L + 4 * d, 4), vr(W + 4 * b, 4)) if n < 14 else (vr(W + 4 * d, 4), vr(L + 4 * b, 4))
                a(f"v_mfma_f32_16x16x32_bf16 {dd}, {A}, {B}, {dd if n else 0}")
        if n + 4 < 14: g_issue(n + 4)
        elif n + 4 < 19:
            if n + 4 == 14:
                a.wait_vm('pol')
                poll_check(92, 12, 2, 0, err=5)
                stamp('ovis')
            o_issue(n + 4 - 14)
        a.check_vm()
    stamp('cend')
    for b in range(1, 4):
        for d in range(5):
            a.ds(f"ds_write_b128 v{vEx}, {vr(AC+4*(4*d+b),4)} offset:{((b-1)*5+d)*1024}", 'pw')
    for b in range(1, 4):
        a(f"""s_sub_u32 s{t2}, s{sWave}, {b}
        s_and_b32 s{t2}, s{t2}, 3
        s_mul_i32 s{t2}, s{t2}, {REGION}
        v_add_u32 v{vEx+b}, s{t2}, v{vG}""")
    a.drain_lg()
    a("s_barrier")
    for d in range(5):
        for b in range(1, 4):
            a.ds(f"ds_read_b128 {vr(RB+12*d+4*(b-1),4)}, v{vEx+b} offset:{((b-1)*5+d)*1024}", f'p{d}')
    a.wait_vm('xr')
    a(f"v_lshlrev_b32 v{vB2}, 16, v{vB2}")
    for d in range(5):
        u_ = AC + 16 * d; p_ = RB + 12 * d; t_ = 48 + 4 * d
        a(f"""v_lshlrev_b32 v{t_}, 16, v{vXR+2*d}
        v_and_b32 v{t_+1}, 0xffff0000, v{vXR+2*d}
        v_lshlrev_b32 v{t_+2}, 16, v{vXR+2*d+1}
        v_and_b32 v{t_+3}, 0xffff0000, v{vXR+2*d+1}""")
        for r_ in range(4): a(f"v_add_f32 v{t_+r_}, v{t_+r_}, v{vB2}")
        for r_ in range(4): a(f"v_add_f32 v{u_+r_}, v{u_+r_}, v{t_+r_}")
        a.wait_lg(f'p{d}')
        for r_ in range(4): a(f"v_add_f32 v{p_+r_}, v{p_+r_}, v{p_+4+r_}")
        for r_ in range(4): a(f"v_add_f32 v{u_+r_}, v{u_+r_}, v{p_+8+r_}")
        for r_ in range(4): a(f"v_add_f32 v{u_+r_}, v{u_+r_}, v{p_+r_}")
        a(f"v_cvt_pk_bf16_f32 v{u_}, v{u_}, v{u_+1}\nv_cvt_pk_bf16_f32 v{u_+1}, v{u_+2}, v{u_+3}")
        a.vmem(f"buffer_store_dwordx2 {vr(u_,2)}, v{vXo}, {sr(sOUT,4)}, 0 offen offset:{32*d}", 'out')
    stamp('end')
    a("s_endpgm")

    a("L_Y:")
    a.vm = []; a.lg = []
    K, V, Q, O, S, P, M = 16, 76, 156, 172, 188, 220, 236
    vMx, vMx2, vKo, vKt, vVo, vOm, vOt = 244, 245, 246, 247, 248, 249, 250
    MK = 64
    sHd = t0
    a("s_waitcnt vmcnt(0)")
    arrive_last(0, 8, sFQo, 4)
    a(f"""s_lshr_b32 s{t2}, s{sIdx}, 1
    s_sub_i32 s{t2}, s{t2}, 2
    s_mul_i32 s{t2}, s{t2}, 15
    v_min_u32 v12, 44, v{vL}
    v_add_u32 v12, s{t2}, v12
    v_max_i32 v12, 0, v12
    v_mul_u32_u24 v12, {FQ_ST}, v12
    v_add_u32 v12, {FQ}, v12""")
    a.vmem(f"buffer_load_dwordx2 v[10:11], v12, {sr(sWS,4)}, 0 offen sc1", 'pol')
    for rho in range(16):
        for hh in range(2):
            kk = 8 * (rho >> 2) + 4 * hh + (rho & 3)
            a(f"s_mov_b32 s{MK+2*rho+hh}, {hx((0xffffffff << kk) & 0xffffffff)}")
    a("v_mov_b32 v2, 0\nv_mov_b32 v3, 0xffff\nv_mov_b32 v4, 0xffff0000")
    for p in range(8):
        a(f"""v_cndmask_b32 v5, v2, v3, {sr(MK+4*p,2)}
        v_cndmask_b32 v6, v2, v4, {sr(MK+4*p+2,2)}
        v_or_b32 v{M+p}, v5, v6""")
    a(f"""v_and_b32 v5, 31, v{vL}
    v_lshrrev_b32 v6, 5, v{vL}
    v_and_b32 v7, 27, v5
    v_cmp_eq_u32 vcc, 20, v5
    v_cmp_eq_u32 s[{sMk}:{sMk+1}], 24, v5
    s_or_b64 vcc, vcc, s[{sMk}:{sMk+1}]
    v_mov_b32 v8, s{sOnes}
    v_cndmask_b32 v7, v2, v8, vcc
    v_lshlrev_b32 v{vKt}, 4, v5
    v_lshl_add_u32 v{vKo}, v6, 9, v{vKt}
    v_mul_u32_u24 v{vVo}, 10240, v6
    v_add_u32 v{vVo}, v{vVo}, v{vKt}""")
    for i in range(80): a(f"v_mov_b32 v{V+i}, v7")
    for b in range(2):
        a(f"""v_mov_b32 v{Q+8*b+4}, 0
        v_mov_b32 v{Q+8*b+5}, 0
        v_mov_b32 v{Q+8*b+6}, 0
        v_mov_b32 v{Q+8*b+7}, 1.0""")
    a(f"s_lshl_b32 s{t1}, s{sIdx}, 1\ns_sub_i32 s{t1}, s{t1}, 8\ns_movk_i32 s{t3}, 0x3f80")
    for tau in range(10):
        a(f"""s_cmp_ge_i32 s{t1}, {-tau}
        s_cselect_b32 s{t2}, s{t3}, {hx(0xF14A3F80)}
        v_mov_b32 v{K+6*tau+4}, v8
        v_mov_b32 v{K+6*tau+5}, s{t2}""")
    a(f"""s_lshl_b32 s{sHd}, s{sXcd}, 2
    s_add_u32 s{sHd}, s{sHd}, s{sSr}
    s_mul_i32 s{t2}, s{sHd}, 5
    s_add_u32 s{t2}, s{t2}, 1
    s_lshr_b32 s{t2}, s{t2}, 1
    s_lshl_b32 s{t2}, s{t2}, 9
    s_movk_i32 s{t3}, 1024
    s_bitcmp1_b32 s{sHd}, 0
    s_cselect_b32 s{t3}, {hx(-512+8)}, s{t3}
    s_mul_i32 s{t4}, s{t1}, 40960""")
    a(f"""s_lshr_b32 s{t5}, s{sHd}, 3
    s_mul_i32 s{t5}, s{t5}, 5
    s_bfe_u32 s{t6}, s{sHd}, 0x20001
    s_add_u32 s{sU}, s{t5}, s{t6}
    s_lshl_b32 s{sU}, s{sU}, 10
    s_and_b32 s{sU2}, s{sHd}, 1
    s_lshl_b32 s{sCnt}, s{sU2}, 9
    s_add_u32 s{sU}, s{sU}, s{sCnt}
    v_bfe_u32 v9, v{vL}, 4, 1
    v_mul_u32_u24 v9, 20480, v9
    v_and_b32 v13, 15, v{vL}
    v_lshl_add_u32 v9, v13, 4, v9
    v_lshl_add_u32 v13, v6, 8, v9
    v_add_u32 v{vOm}, s{sU}, v13
    s_add_u32 s{sU}, s{t5}, 4
    s_lshl_b32 s{sU}, s{sU}, 10
    s_lshl_b32 s{t6}, s{t6}, 8
    s_add_u32 s{sU}, s{sU}, s{t6}
    s_lshl_b32 s{sU2}, s{sU2}, 3
    s_add_u32 s{sU}, s{sU}, s{sU2}
    v_add_u32 v{vOt}, s{sU}, v9""")
    a.wait_vm('pol')
    poll_check(10, 12, 2, 0, err=6)
    stamp('qvis')
    def toff(dst, base_imm, tau, extra):
        a(f"s_add_u32 s{dst}, s{t4}, {hx(base_imm + tau*40960)}")
        for e in extra: a(f"s_add_u32 s{dst}, s{dst}, s{e}")
        if tau < 8:
            a(f"s_cmp_ge_i32 s{t1}, {-tau}\ns_cselect_b32 s{dst}, s{dst}, {hx(OOB)}")
    for b in range(2):
        toff(t5, QF, 8 + b, [t2])
        a.vmem(f"buffer_load_dwordx4 {vr(Q+8*b,4)}, v{vKo}, {sr(sWS,4)}, s{t5} offen sc1", 'k')
    for tau in range(10):
        toff(t5, KF, tau, [t2])
        a.vmem(f"buffer_load_dwordx4 {vr(K+6*tau,4)}, v{vKo}, {sr(sWS,4)}, s{t5} offen sc1", 'k')
    a(f"s_add_u32 s{t2}, s{t2}, s{t3}\ns_mov_b32 exec_hi, 0")
    for b in range(2):
        toff(t5, QF, 8 + b, [t2])
        a.vmem(f"buffer_load_dwordx2 {vr(Q+8*b+6,2)}, v{vKt}, {sr(sWS,4)}, s{t5} offen sc1", 'k')
    for tau in range(10):
        toff(t5, KF, tau, [t2])
        a.vmem(f"buffer_load_dwordx2 {vr(K+6*tau+4,2)}, v{vKt}, {sr(sWS,4)}, s{t5} offen sc1", 'k')
    a(f"s_mul_i32 s{t2}, s{sHd}, 320\ns_mov_b32 exec_lo, 0xfffff\ns_mov_b32 exec_hi, 0xfffff")
    for tau in range(10):
        for j in range(2):
            toff(t5, VF + 20480 * j, tau, [t2])
            a.vmem(f"buffer_load_dwordx4 {vr(V+8*tau+4*j,4)}, v{vVo}, {sr(sWS,4)}, s{t5} offen sc1", f'v{tau}')
    a("s_mov_b64 exec, -1")
    a(f"s_mul_i32 s{t2}, s{sIdx}, 81920\ns_add_u32 s{t2}, s{t2}, {OF}\ns_add_u32 s{t3}, s{t2}, 40960\ns_mov_b32 s{t4}, 0x07060302")
    a.wait_vm('k')
    stamp('kv')
    def qk(buf, tau, b):
        d = vr(S + 16 * buf, 16)
        a(f"v_mfma_f32_32x32x16_bf16 {d}, {vr(K+6*tau,4)}, {vr(Q+8*b,4)}, 0")
        a(f"v_mfma_f32_32x32x16_bf16 {d}, {vr(K+6*tau+2,4)}, {vr(Q+8*b+4,4)}, {d}")
    def merge():
        for rho in range(16):
            a(f"v_cndmask_b32 v{S+rho}, v{S+rho}, v{S+16+rho}, {sr(MK+2*rho,2)}")
    def maxes(buf, first):
        s_ = S + 16 * buf
        if first:
            a(f"v_max3_f32 v{vMx}, v{s_}, v{s_+1}, v{s_+2}\nv_max3_f32 v{vMx2}, v{s_+3}, v{s_+4}, v{s_+5}")
            rest = list(range(6, 16))
        else: rest = list(range(16))
        for k in range(0, len(rest), 2):
            m_ = vMx if (k // 2) % 2 == 0 else vMx2
            a(f"v_max3_f32 v{m_}, v{s_+rest[k]}, v{s_+rest[k+1]}, v{m_}")
    for b in range(2):
        far, diag = b, b + 8
        mids = list(range(b + 1, b + 8))
        qk(0, far, b); qk(1, diag, b)
        merge()
        qk(1, mids[0], b)
        maxes(0, True)
        for k, tau in enumerate(mids):
            cur = (k + 1) & 1
            if k + 1 < len(mids): qk(cur ^ 1, mids[k + 1], b)
            maxes(cur, False)
        a(f"""v_max_f32 v{vMx}, v{vMx}, v{vMx2}
        v_mov_b32 v2, v{vMx}
        v_permlane32_swap_b32 v{vMx}, v2
        v_max_f32 v2, v{vMx}, v2
        v_xor_b32 v2, 0x80000000, v2
        v_and_b32 v3, 0xffff0000, v2
        v_sub_f32 v4, v2, v3
        v_and_b32 v5, 0xffff0000, v4
        v_sub_f32 v5, v4, v5
        v_mov_b32 v6, 1.0
        s_mov_b32 exec_lo, 0
        v_perm_b32 v{Q+8*b+6}, v4, v3, s{t4}
        v_perm_b32 v{Q+8*b+7}, v6, v5, s{t4}
        s_mov_b32 exec_lo, -1""")
        od = vr(O, 16)
        def pv(tau, j, preg, first):
            a(f"v_mfma_f32_32x32x16_bf16 {od}, {vr(V+8*tau+4*j,4)}, {vr(preg,4)}, {0 if first else od}")
        def expcvt(buf, j):
            s_ = S + 16 * buf + 8 * j
            for k in range(8): a(f"v_exp_f32 v{s_+k}, v{s_+k}")
            for k in range(4): a(f"v_cvt_pk_bf16_f32 v{P+4*j+k}, v{s_+2*k}, v{s_+2*k+1}")
        qk(0, far, b); qk(1, diag, b)
        merge()
        qk(1, mids[0], b)
        a.wait_vm(f'v{diag}')
        for j in range(2):
            expcvt(0, j)
            for k in range(4):
                a(f"v_bfi_b32 v{P+8+4*j+k}, v{M+4*j+k}, 0, v{P+4*j+k}\nv_and_b32 v{P+4*j+k}, v{M+4*j+k}, v{P+4*j+k}")
            pv(far, j, P + 8 + 4 * j, j == 0)
            pv(diag, j, P + 4 * j, False)
        for k, tau in enumerate(mids):
            cur = (k + 1) & 1
            if k + 1 < len(mids): qk(cur ^ 1, mids[k + 1], b)
            for j in range(2):
                expcvt(cur, j)
                pv(tau, j, P + 4 * j, False)
        a(f"""s_mov_b32 vcc_lo, 0
        s_mov_b32 vcc_hi, -1
        v_cndmask_b32 v2, v{O+12}, v{O+8}, vcc
        v_rcp_f32 v2, v2""")
        for k in range(12): a(f"v_mul_f32 v{O+k}, v{O+k}, v2")
        o_ = 2 + 0
        for k in range(6): a(f"v_cvt_pk_bf16_f32 v{4+k}, v{O+2*k}, v{O+2*k+1}")
        so = t2 if b == 0 else t3
        a.vmem(f"buffer_store_dwordx4 v[4:7], v{vOm}, {sr(sWS,4)}, s{so} offen sc1", 'ost')
        a("s_mov_b32 exec_hi, 0")
        a.vmem(f"buffer_store_dwordx2 v[8:9], v{vOt}, {sr(sWS,4)}, s{so} offen sc1", 'ost')
        a("s_mov_b32 exec_hi, -1")
    stamp('att')
    a.drain_vm()
    a(f"""s_lshl_b32 s{t2}, s{sIdx}, 5
    s_add_u32 s{t2}, s{t2}, s{sHd}
    s_mul_i32 s{t2}, s{t2}, {FO_ST}
    s_add_u32 s{t2}, s{t2}, {FO}""")
    flag_store(t2, 4)
    stamp('oflag')
    a("L_end:\ns_endpgm")
    return a.L

HEADER = open('cdna_kernels/%s.s.ref' % NAME).read().split('; Override launch')[0]

def build(cfg, path):
    body = gen(cfg)
    body, n = pad_hazards(body, verbose=getattr(cfg, 'verbose', False))
    out = HEADER + f"; @launch grid=(256,1,1) block=(512,1,1) lds={LDS_BYTES}\n"
    out += f""".amdgcn_target "amdgcn-amd-amdhsa--gfx950"
.text
.globl {NAME}_kernel
.p2align 8
.type {NAME}_kernel,@function
{NAME}_kernel:
"""
    out += "\n".join(("" if l.endswith(':') else "    ") + l for l in body) + "\n"
    out += f""".section .rodata,"a"
.p2align 6
.amdhsa_kernel {NAME}_kernel
  .amdhsa_next_free_vgpr 256
  .amdhsa_next_free_sgpr 102
  .amdhsa_accum_offset 256
  .amdhsa_group_segment_fixed_size 0
  .amdhsa_kernarg_size 88
  .amdhsa_user_sgpr_count 2
  .amdhsa_user_sgpr_kernarg_segment_ptr 1
  .amdhsa_system_sgpr_workgroup_id_x 1
.end_amdhsa_kernel
"""
    open(path, 'w').write(out)
    print(f"wrote {path}: {len(body)} lines, {n} pads")

if __name__ == '__main__':
    c = Cfg(); c.names = {}
    c.verbose = '-v' in sys.argv
    if '--prof' in sys.argv:
        c.prof = True
        build(c, 'prof.s')
        import json; json.dump(c.names, open('prof_names.json', 'w'))
    else:
        build(c, 'cdna_kernels/%s.s' % NAME)
```
